```python
import torch

def _softmax(x, axis=-1):
    return torch.softmax(x, dim=axis)
def _gelu(x):
    return torch.nn.functional.gelu(x, approximate="tanh")
def _silu(x):
    return torch.nn.functional.silu(x)
def _sigmoid(x):
    return torch.sigmoid(x)
def _layernorm(x, axis=-1, eps=1e-5):
    m = x.mean(dim=axis, keepdim=True)
    v = x.var(dim=axis, keepdim=True, unbiased=False)
    return (x - m) / torch.sqrt(v + eps)
def _scatter_add(tgt, idx, src, axis=0):
    return tgt.clone().index_add_(axis, idx, src)
def _segment_sum(src, seg, n):
    out = torch.zeros((n,) + src.shape[1:], dtype=src.dtype)
    return out.index_add_(0, seg, src)
def _pad(x, pw):
    flat = tuple(v for pair in reversed(pw) for v in pair)
    return torch.nn.functional.pad(x, flat)

kernel_name = 'standalone__mha_block_cached__near_ridge'

def setup_inputs():

    _w = (lambda a: (lambda t: t.to(torch.bfloat16) if t.is_floating_point() else t)(torch.as_tensor(a)))
    B, Sq, D = 8, 128, 1024
    H, Sk, Dh = 32, 512, 128
    return {
        "x": _w((lambda *s: torch.randn(*s, dtype=torch.bfloat16) * 0.8)(B, Sq, D)),
        "k_cache": _w((lambda *s: torch.randn(*s, dtype=torch.bfloat16) * 0.8)(B, H, Sk, Dh)),
        "v_cache": _w((lambda *s: torch.randn(*s, dtype=torch.bfloat16) * 0.05)(B, H, Sk, Dh)),
        "wq": _w((lambda *s: torch.randn(*s, dtype=torch.bfloat16) * 0.8)(D, H * Dh) * (D ** -0.5)),
        "wo": _w((lambda *s: torch.randn(*s, dtype=torch.bfloat16) * 0.05)(H * Dh, D) * ((H * Dh) ** -0.5)),
    }

def reference(x, k_cache, v_cache, wq, wo):
    B, Sq, D = x.shape
    H, Dh = 32, 128
    q = (lambda x, *d: x.permute(*d))((x @ wq).reshape(B, Sq, H, Dh), 0, 2, 1, 3)
    scores = torch.einsum("bhqd,bhkd->bhqk", q, k_cache) * (Dh ** -0.5)
    p = _softmax(scores, axis=-1)
    o = torch.einsum("bhqk,bhkd->bhqd", p, v_cache)
    return (lambda x, *d: x.permute(*d))(o, 0, 2, 1, 3).reshape(B, Sq, H * Dh) @ wo
```

```python
import re

def _regs(tok):
    tok = tok.strip()
    neg = tok.lstrip('-')
    if neg.startswith('abs(') or neg.startswith('|'):
        neg = neg.replace('abs(', '').replace(')', '').replace('|', '')
    m = re.fullmatch(r'([vas])\[(\d+):(\d+)\]', neg)
    if m:
        return {f"{m.group(1)}{i}" for i in range(int(m.group(2)), int(m.group(3)) + 1)}
    m = re.fullmatch(r'([vas])(\d+)', neg)
    if m:
        return {neg}
    if neg in ('vcc', 'exec', 'm0', 'scc'):
        return {neg}
    if neg in ('vcc_lo', 'vcc_hi'):
        return {'vcc'}
    return set()

TRANS = ('v_exp_f32', 'v_log_f32', 'v_rcp_f32', 'v_rsq_f32', 'v_sqrt_f32', 'v_sin_f32', 'v_cos_f32')

class Ins:
    __slots__ = ('text', 'op', 'kind', 'rd', 'wr', 'label', 'lds_dst', 'meta')
    def __init__(self, text):
        self.text = text
        self.meta = {}
        self.label = None
        t = text.split(';')[0].strip()
        self.rd, self.wr, self.lds_dst = set(), set(), set()
        if t.endswith(':'):
            self.kind, self.op, self.label = 'label', '', t[:-1]
            return
        if not t or t.startswith('.'):
            self.kind, self.op = 'dir', ''
            return
        parts = t.split(None, 1)
        op = parts[0]
        self.op = op
        ops = []
        if len(parts) > 1:
            ops = [x.strip() for x in re.split(r',(?![^\[]*\])', parts[1])]
            last = ops[-1].split()
            if last:
                ops[-1] = last[0]
        R = [_regs(x) for x in ops]
        if op.startswith('v_mfma'):
            self.kind = 'mfma'
            self.wr = R[0]; self.rd = R[1] | R[2] | R[3]
            self.meta = dict(A=R[1], B=R[2], C=R[3], D=R[0], passes=8 if '32x32' in op else 4)
        elif op.startswith('ds_read') or op.startswith('ds_bpermute') or op.startswith('ds_swizzle'):
            self.kind = 'ds'
            self.wr = R[0]; self.rd = set().union(*R[1:]) if len(R) > 1 else set()
            self.lds_dst = R[0]
        elif op.startswith('ds_write') or op.startswith('ds_add'):
            self.kind = 'ds'
            self.rd = set().union(*R)
        elif op.startswith('buffer_load') or op.startswith('global_load'):
            self.kind = 'vmem'
            if ' lds' in t or '_lds_' in op:
                self.rd = set().union(*R) | {'m0'}
                self.meta = dict(dma=True)
            else:
                self.wr = R[0]; self.rd = set().union(*R[1:])
                self.meta = dict(load=True)
        elif op.startswith('buffer_store') or op.startswith('global_store'):
            self.kind = 'vmem'
            self.rd = set().union(*R)
            if op.startswith('buffer_store'):
                self.meta = dict(store=True, data=R[0], wide=('x3' in op or 'x4' in op))
            else:
                self.meta = dict(store=True, data=R[1], wide=('x3' in op or 'x4' in op))
        elif op.startswith('buffer_atomic') or op.startswith('global_atomic'):
            self.kind = 'vmem'
            self.rd = set().union(*R)
            self.meta = dict(atomic=True)
            if ' sc0' in t:
                self.wr = R[0]
        elif op.startswith('buffer_') or op.startswith('global_'):
            self.kind = 'vmem'
        elif op.startswith('s_waitcnt') or op in ('s_barrier', 's_nop', 's_endpgm', 's_setprio', 's_sleep'):
            self.kind = 'ctl'
            if op == 's_nop':
                self.meta = dict(n=int(ops[0], 0) + 1)
        elif op.startswith('s_cbranch') or op == 's_branch':
            self.kind = 'br'
            self.meta = dict(target=ops[0])
            if 'vcc' in op: self.rd = {'vcc'}
            if 'exec' in op: self.rd = {'exec'}
        elif op.startswith('s_load') or op.startswith('s_memtime') or op.startswith('s_memrealtime') or op.startswith('s_buffer_load'):
            self.kind = 'smem'
            self.wr = R[0]; self.rd = set().union(*R[1:]) if len(R) > 1 else set()
        elif op.startswith('s_cmp') or op.startswith('s_bitcmp'):
            self.kind = 'salu'
            self.rd = set().union(*R)
        elif op.startswith('s_'):
            self.kind = 'salu'
            self.wr = R[0] if R else set()
            self.rd = set().union(*R[1:]) if len(R) > 1 else set()
            if 'saveexec' in op:
                self.wr = self.wr | {'exec'}; self.rd = self.rd | {'exec'}
        elif op.startswith('v_cmp'):
            self.kind = 'valu'
            self.wr = R[0]; self.rd = set().union(*R[1:])
            if op.startswith('v_cmpx'): self.wr = self.wr | {'exec'}
        elif op.startswith('v_readfirstlane') or op.startswith('v_readlane'):
            self.kind = 'valu'
            self.wr = R[0]; self.rd = set().union(*R[1:])
            self.meta = dict(readlane=True)
        elif op.startswith('v_permlane32_swap') or op.startswith('v_permlane16_swap'):
            self.kind = 'valu'
            self.wr = R[0] | R[1]; self.rd = R[0] | R[1]
            self.meta = dict(permlane=True)
        elif op.startswith('v_'):
            self.kind = 'valu'
            self.wr = R[0]; self.rd = set().union(*R[1:]) if len(R) > 1 else set()
            if op.startswith('v_fmac') or op.startswith('v_mac') or op.startswith('v_pk_fmac') or op.startswith('v_dot2c'):
                self.rd = self.rd | R[0]
            if op.startswith(('v_add_co', 'v_sub_co', 'v_addc_co', 'v_subb_co')):
                self.wr = R[0] | R[1]
                self.rd = set().union(*R[2:])
            if op.startswith('v_cndmask') and len(ops) == 3:
                self.rd = self.rd | {'vcc'}
            if op in TRANS or op.replace('_e32', '').replace('_e64', '') in TRANS:
                self.meta = dict(trans=True)
        else:
            raise ValueError("unknown instruction: " + text)

def states(ins):
    if ins.kind in ('label', 'dir'):
        return 0
    if ins.op == 's_nop':
        return ins.meta['n']
    return 1

def need_between(p, c):
    n = 0
    vw = {r for r in p.wr if r[0] in 'va'}
    sw = {r for r in p.wr if r[0] == 's' and r != 'scc' or r == 'vcc'}
    if p.kind == 'valu':
        if c.kind == 'mfma' and (vw & c.rd): n = max(n, 2)
        if c.kind == 'valu' and c.meta.get('permlane') and (vw & c.rd): n = max(n, 2)
        if c.kind == 'valu' and c.meta.get('readlane') and (vw & c.rd): n = max(n, 1)
        if p.meta.get('trans') and c.kind in ('valu', 'mfma') and (vw & c.rd): n = max(n, 1 if c.kind == 'valu' else 2)
        if sw and c.kind == 'vmem' and (sw & c.rd): n = max(n, 5)
        if sw and c.kind == 'valu' and (sw & c.rd): n = max(n, 2)
        if sw and c.kind in ('salu', 'smem') and (sw & c.rd): n = max(n, 4)
        if 'exec' in p.wr and c.kind in ('valu', 'mfma'): n = max(n, 4)
        if 'vcc' in p.wr and c.kind == 'br' and 'vcc' in c.rd: n = max(n, 5)
    if p.kind == 'salu':
        if 'm0' in p.wr and c.kind == 'vmem' and c.meta.get('dma'): n = max(n, 1)
        if 'exec' in p.wr and c.kind == 'mfma': n = max(n, 4)
    if p.kind == 'mfma':
        P = p.meta['passes']
        D = p.meta['D']
        big = {2: 5, 4: 8, 8: 12, 16: 20}[P]
        part = {2: 4, 4: 6, 8: 10, 16: 18}[P]
        war = {2: 1, 4: 3, 8: 7, 16: 15}[P]
        if c.kind == 'mfma':
            if D & (c.meta['A'] | c.meta['B']): n = max(n, big)
            if D & c.meta['C']:
                if not (c.meta['C'] == D and c.meta['passes'] == P): n = max(n, part)
            if (D & c.meta['D']) and not (c.meta['C'] == D): n = max(n, part)
        else:
            if D & (c.rd | c.wr): n = max(n, big)
            if c.kind == 'valu' and (p.meta['C'] & c.wr): n = max(n, war)
            if c.kind in ('ds', 'vmem') and (p.meta['C'] & c.wr): n = max(n, war)
    if p.kind == 'vmem' and p.meta.get('store') and p.meta.get('wide'):
        if p.meta['data'] & c.wr: n = max(n, 2)
    return n

class Prog:
    def __init__(self):
        self.items = []
    def __call__(self, text):
        for line in text.split('\n'):
            line = line.strip()
            if line:
                self.items.append(Ins(line))
    def comment(self, s):
        i = Ins('.dummy'); i.text = '; ' + s; self.items.append(i)
    def loop_begin(self, name):
        self.items.append(('lb', name)); self(name + ':')
    def loop_end(self, name):
        self.items.append(('le', name))

    def _trace(self, reps=2):
        def expand(lo, hi):
            out = []; i = lo
            while i < hi:
                it = self.items[i]
                if isinstance(it, tuple) and it[0] == 'lb':
                    depth = 1; j = i + 1
                    while depth:
                        if isinstance(self.items[j], tuple):
                            depth += 1 if self.items[j][0] == 'lb' else -1
                        j += 1
                    body = expand(i + 1, j - 1)
                    out += body * reps
                    i = j
                else:
                    out.append(i); i += 1
            return out
        return expand(0, len(self.items))

    def finalize(self, verbose=False):
        waits = {}
        trace = self._trace(3)
        changed = True
        while changed:
            changed = False
            fifo = []
            smem = False
            for idx in trace:
                ins = self.items[idx]
                if ins.kind in ('label', 'dir'): continue
                if idx in waits:
                    n = waits[idx]
                    if len(fifo) > n: fifo = fifo[len(fifo) - n:] if n else []
                    if n == 0: smem = False
                if ins.op == 's_waitcnt':
                    m = re.search(r'lgkmcnt\((\d+)\)', ins.text)
                    if m:
                        n = int(m.group(1))
                        if len(fifo) > n: fifo = fifo[len(fifo) - n:] if n else []
                        if n == 0: smem = False
                    continue
                touched = ins.rd | ins.wr
                need = None
                for k, dst in enumerate(fifo):
                    if dst & touched:
                        need = len(fifo) - 1 - k
                if need is not None:
                    need = min(need, 15)
                    if smem: need = 0
                    if idx not in waits or waits[idx] > need:
                        waits[idx] = need; changed = True
                    fifo = fifo[len(fifo) - need:] if need else []
                if ins.kind == 'ds':
                    fifo.append(ins.lds_dst)
                if ins.kind == 'smem':
                    smem = True
                    fifo.append(set())
        lin = []
        newidx = {}
        for idx, it in enumerate(self.items):
            if isinstance(it, tuple):
                lin.append(it); continue
            if idx in waits:
                lin.append(Ins(f"s_waitcnt lgkmcnt({waits[idx]})"))
            lin.append(it)
        self.items = lin
        pads = {}
        WIN = 24
        while True:
            trace = self._trace(2)
            hist = []
            added = False
            for idx in trace:
                ins = self.items[idx]
                if ins.kind in ('label', 'dir'): continue
                pad = pads.get(idx, 0)
                dist = pad
                need = 0
                for p in reversed(hist):
                    if p == 'PAD': continue
                    pi, st = p
                    if pi is not None:
                        nb = need_between(pi, ins)
                        if nb > dist: need = max(need, nb - dist)
                    dist += st
                    if dist > WIN: break
                if need:
                    pads[idx] = pad + need; added = True; pad += need
                if pad: hist.append((None, pad))
                hist.append((ins, states(ins)))
                if len(hist) > 64: hist = hist[-48:]
            if not added: break
        out = []
        npad = 0
        for idx, it in enumerate(self.items):
            if isinstance(it, tuple): continue
            if idx in pads:
                n = pads[idx]; npad += n
                while n > 0:
                    k = min(n, 16); out.append(f"    s_nop {k-1}"); n -= k
            if it.kind == 'label': out.append(it.text)
            else: out.append("    " + it.text)
        if verbose:
            print(f"[asmlib] {len(out)} lines, {len(waits)} auto lgkm waits, {len(pads)} pad sites ({npad} states)")
        return "\n".join(out) + "\n"
```

```python
import math, sys
from asmlib import Prog

SCALE_LOG2 = math.log2(math.e) / math.sqrt(128.0)
import struct
def f32bits(x): return struct.unpack('<I', struct.pack('<f', x))[0]

WS_O = 0
WS_PART = 16 << 20
WS_PROF = 64 << 20

def vr(b, n=1): return f"v{b}" if n == 1 else f"v[{b}:{b+n-1}]"
def ar(b, n=1): return f"a{b}" if n == 1 else f"a[{b}:{b+n-1}]"
def sr(b, n=1): return f"s{b}" if n == 1 else f"s[{b}:{b+n-1}]"

def srd(P, d, lo, hi, size):
    P(f"s_mov_b32 s{d}, s{lo}\ns_and_b32 s{d+1}, s{hi}, 0xffff\ns_mov_b32 s{d+2}, {size}\ns_mov_b32 s{d+3}, 0x20000")

def add64(P, lo, hi, off):
    P(f"s_add_u32 s{lo}, s{lo}, {off}\ns_addc_u32 s{hi}, s{hi}, 0")

def stamp(P, o, slot):
    if o.get('prof'):
        P(f"s_memrealtime s[{slot}:{slot+1}]")

def interleave(P, mf, fill):
    for i, m in enumerate(mf):
        P(m)
        if i < len(fill):
            for f in fill[i]: P(f)

def lane_common(P, VL):
    P(f"v_lshrrev_b32 v1, 6, v0\nv_and_b32 v{VL}, 63, v0\ns_nop 0\nv_readfirstlane_b32 s24, v1")

def tr_addr(P, VL, dst, t0, t1, t2):
    P(f"v_lshrrev_b32 v{t0}, 5, v{VL}")
    P(f"v_lshlrev_b32 v{t0}, 11, v{t0}")
    P(f"v_bfe_u32 v{t1}, v{VL}, 2, 2")
    P(f"v_lshl_add_u32 v{t0}, v{t1}, 8, v{t0}")
    P(f"v_lshl_add_u32 v{t0}, v{t1}, 6, v{t0}")
    P(f"v_bfe_u32 v{t2}, v{VL}, 4, 1")
    P(f"v_lshl_add_u32 v{t0}, v{t2}, 5, v{t0}")
    P(f"v_and_b32 v{t2}, 1, v{VL}")
    P(f"v_lshl_add_u32 v{t0}, v{t2}, 4, v{t0}")
    P(f"v_bfe_u32 v{t2}, v{VL}, 1, 1")
    P(f"v_lshl_add_u32 v{dst}, v{t2}, 3, v{t0}")
    for mt in range(1, 4):
        P(f"v_xor_b32 v{dst+mt}, {mt*64}, v{dst}")

def tr_reads(dst_kind, dst, vtr, mt, off):
    f = ar if dst_kind == 'a' else vr
    return [f"ds_read_b64_tr_b16 {f(dst,2)}, v{vtr+mt} offset:{off}",
            f"ds_read_b64_tr_b16 {f(dst+2,2)}, v{vtr+mt} offset:{off+1024}"]

MF = "v_mfma_f32_32x32x16_bf16"

def k1(o):
    P = Prog()
    name = "mha_k1_kernel"
    auxq = o.get('aux_q', ''); auxkv = o.get('aux_kv', 'nt'); auxo = o.get('aux_o', '')
    VL = 30
    VX, VW, VXR, VTR, VKR, VK, VV = 1, 5, 9, 13, 17, 25, 29
    QF = 32
    S = 64
    O = 192
    T = 128
    P(f"{name}:")
    P("s_cmp_ge_u32 s2, 256\ns_cbranch_scc1 L_k1_end")
    stamp(P, o, 60)
    P("s_load_dwordx4 s[36:39], s[0:1], 0\ns_load_dwordx4 s[40:43], s[0:1], 16\ns_load_dwordx2 s[44:45], s[0:1], 56")
    lane_common(P, VL)
    P("s_and_b32 s3, s2, 7\ns_lshr_b32 s34, s2, 3")
    P("s_and_b32 s25, s3, 1\ns_lshl_b32 s25, s25, 2\ns_and_b32 s35, s34, 3\ns_add_u32 s25, s25, s35")
    P("s_lshr_b32 s26, s3, 1\ns_lshl_b32 s26, s26, 3\ns_lshr_b32 s46, s34, 2\ns_add_u32 s26, s26, s46")
    if o.get('rot', 1):
        P("s_lshl_b32 s27, s35, 2\ns_lshl_b32 s46, s46, 1\ns_add_u32 s27, s27, s46\ns_and_b32 s27, s27, 15")
    else:
        P("s_mov_b32 s27, 0")
    t0, t1, t2, t3 = T, T+1, T+2, T+3
    P(f"v_lshrrev_b32 v{t0}, 3, v{VL}")
    P(f"v_mov_b32 v{t3}, s24")
    P(f"v_lshl_add_u32 v{t0}, v{t3}, 5, v{t0}")
    P(f"v_lshlrev_b32 v{t0}, 11, v{t0}")
    P(f"v_lshrrev_b32 v{t1}, 4, v{VL}")
    P(f"v_and_b32 v{t2}, 7, v{VL}")
    P(f"v_xor_b32 v{t2}, v{t2}, v{t1}")
    for pp in range(4):
        P(f"v_xor_b32 v{VX+pp}, {4*(pp&1)}, v{t2}")
        P(f"v_lshl_add_u32 v{VX+pp}, v{VX+pp}, 4, v{t0}")
        if pp: P(f"v_add_u32 v{VX+pp}, {pp*15360}, v{VX+pp}")
    P(f"v_and_b32 v{t0}, 15, v{VL}")
    P(f"v_lshlrev_b32 v{t2}, 2, v{t1}")
    P(f"v_xor_b32 v{t2}, v{t2}, v{t0}")
    P(f"v_lshlrev_b32 v{t2}, 4, v{t2}")
    P(f"v_lshl_add_u32 v{VV}, v{t1}, 8, v{t2}")
    P(f"v_lshl_add_u32 v{t3}, v{t3}, 4, v{t1}")
    P(f"v_lshl_add_u32 v{VW}, v{t3}, 13, v{t2}")
    for pp in range(1, 4):
        P(f"v_add_u32 v{VW+pp}, {pp*(4*8192-1024)}, v{VW}")
    for pp in range(4):
        P(f"v_add_u32 v{t2}, {4*pp}, v{t1}")
        P(f"v_xor_b32 v{t2}, v{t2}, v{t0}")
        P(f"v_lshlrev_b32 v{t2}, 4, v{t2}")
        P(f"v_lshl_add_u32 v{VK+pp}, v{t1}, 8, v{t2}")
    P(f"v_and_b32 v{t0}, 31, v{VL}")
    P(f"v_lshrrev_b32 v{t1}, 5, v{VL}")
    P(f"v_bfe_u32 v{t2}, v{VL}, 1, 3")
    P(f"v_xor_b32 v{t2}, v{t2}, v{t1}")
    P(f"v_lshlrev_b32 v{t2}, 4, v{t2}")
    P(f"v_mov_b32 v{t3}, s24")
    P(f"v_lshl_add_u32 v{t3}, v{t3}, 5, v{t0}")
    P(f"v_lshl_add_u32 v{VXR}, v{t3}, 7, v{t2}")
    for ks in range(1, 4):
        P(f"v_xor_b32 v{VXR+ks}, {ks*32}, v{VXR}")
    P(f"v_and_b32 v{t2}, 0x13, v{t0}")
    P(f"v_bfe_u32 v{t3}, v{t0}, 2, 1")
    P(f"v_lshl_add_u32 v{t2}, v{t3}, 3, v{t2}")
    P(f"v_bfe_u32 v{t3}, v{t0}, 3, 1")
    P(f"v_lshl_add_u32 v{t2}, v{t3}, 2, v{t2}")
    P(f"v_and_b32 v{t3}, 15, v{t2}")
    P(f"v_xor_b32 v{t3}, v{t3}, v{t1}")
    P(f"v_lshlrev_b32 v{t3}, 4, v{t3}")
    P(f"v_lshl_add_u32 v{VKR}, v{t2}, 8, v{t3}")
    for ks in range(1, 8):
        P(f"v_xor_b32 v{VKR+ks}, {ks*32}, v{VKR}")
    tr_addr(P, VL, VTR, t0, t1, t2)
    P("s_waitcnt lgkmcnt(0)")
    P("s_lshl_b32 s46, s25, 18"); add64(P, 36, 37, "s46"); srd(P, 4, 36, 37, 262144)
    P("s_lshl_b32 s46, s26, 8"); add64(P, 42, 43, "s46")
    srd(P, 8, 42, 43, 0); P(f"s_sub_u32 s10, {1024*8192}, s46")
    P("s_lshl_b32 s46, s25, 5\ns_add_u32 s46, s46, s26\ns_lshl_b32 s46, s46, 17")
    add64(P, 38, 39, "s46"); srd(P, 12, 38, 39, 131072)
    add64(P, 40, 41, "s46"); srd(P, 16, 40, 41, 131072)
    P("s_lshl_b32 s46, s25, 2\ns_add_u32 s46, s46, s24\ns_lshl_b32 s46, s46, 8\ns_lshl_b32 s47, s26, 3\ns_add_u32 s46, s46, s47\ns_lshl_b32 s46, s46, 10")
    P("s_mov_b32 s48, s44\ns_mov_b32 s49, s45")
    add64(P, 48, 49, "s46"); srd(P, 20, 48, 49, 8192)
    P("s_lshl_b32 s31, s24, 12")

    def dma_chunk(stage_sreg):
        x = [f"s_add_u32 m0, {stage_sreg}, s31\ns_lshl_b32 s32, s27, 7\n"
             f"buffer_load_dwordx4 v{VX}, s[4:7], s32 offen {auxq} lds"]
        for pp in range(1, 4):
            x.append(f"buffer_load_dwordx4 v{VX+pp}, s[4:7], s32 offen offset:{pp*1024} {auxq} lds")
        w = [f"s_add_u32 s33, {stage_sreg}, s31\ns_add_u32 m0, s33, 16384\ns_lshl_b32 s33, s27, 19\n"
             f"buffer_load_dwordx4 v{VW}, s[8:11], s33 offen {auxq} lds"]
        for pp in range(1, 4):
            w.append(f"buffer_load_dwordx4 v{VW+pp}, s[8:11], s33 offen offset:{pp*1024} {auxq} lds")
        adv = "s_add_u32 s27, s27, 1\ns_and_b32 s27, s27, 15"
        return x + w, adv

    def dma_kv(kind, slot_sreg, off_sreg):
        out = []
        for g in range(2):
            pre = (f"s_lshl_b32 s33, s24, 13\ns_add_u32 s33, s33, {g*4096}\ns_add_u32 m0, {slot_sreg}, s33\ns_add_u32 s33, s33, {off_sreg}\n")
            for pp in range(4):
                v = VK + pp if kind == 'k' else VV
                d = 12 if kind == 'k' else 16
                off = f" offset:{pp*1024}" if pp else ""
                out.append((pre if pp == 0 else "") + f"buffer_load_dwordx4 v{v}, s[{d}:{d+3}], s33 offen{off} {auxkv} lds")
        return out

    P("s_mov_b32 s29, 0")
    d, adv = dma_chunk("s29")
    for x in d: P(x)
    P(adv)
    P("s_mov_b32 s29, 32768")
    d, adv = dma_chunk("s29")
    for x in d: P(x)
    P(adv)
    P("s_mov_b32 s29, 65536")
    for i in range(64): P(f"v_mov_b32 v{S+i}, 0")
    for i in range(20): P(f"v_accvgpr_write_b32 a{20+i}, 0")
    P("s_mov_b32 s28, 0\ns_mov_b32 s30, 0")
    stamp(P, o, 62)
    P("s_waitcnt vmcnt(8)\ns_barrier")
    stamp(P, o, 64)

    def qstep(use, load, ks, extra):
        ub, lb = 20*use, 20*(load if load is not None else 0)
        mf = [f"{MF} v[{S+16*mt}:{S+16*mt+15}], {ar(ub+4+4*mt,4)}, {ar(ub,4)}, v[{S+16*mt}:{S+16*mt+15}]" for mt in range(4)]
        fill = [[] for _ in range(4)]
        if load is not None:
            fill[0].append(f"ds_read_b128 {ar(lb,4)}, v{VXR+ks}")
            for mt in range(4):
                fill[mt] += tr_reads('a', lb+4+4*mt, VTR, mt, 16384 + 4096*ks)
        for i, e in enumerate(extra):
            fill[e[0]].append(e[1])
        interleave(P, mf, fill)

    def qchunk(dmas, adv, last=False):
        qstep(1, 0, 0, [(1, dmas[0]), (3, dmas[1])])
        qstep(0, 1, 1, [(1, dmas[2]), (3, dmas[3])])
        qstep(1, 0, 2, [(1, dmas[4]), (3, dmas[5])])
        qstep(0, 1, 3, [(1, dmas[6]), (3, dmas[7])])
        if adv: P(adv)
        P("s_add_u32 s34, s28, 32768\ns_cmp_eq_u32 s34, 98304\ns_cselect_b32 s34, 0, s34\ns_sub_u32 s35, s34, s28\ns_mov_b32 s28, s34")
        for i in range(4):
            P(f"v_add_u32 v{VXR+i}, s35, v{VXR+i}\nv_add_u32 v{VTR+i}, s35, v{VTR+i}")
        P("s_add_u32 s29, s29, 32768\ns_cmp_eq_u32 s29, 98304\ns_cselect_b32 s29, 0, s29")
        if not last:
            P("s_waitcnt vmcnt(8) lgkmcnt(0)\ns_barrier")

    P.loop_begin("L_k1_q")
    d, adv = dma_chunk("s29")
    qchunk(d, adv)
    P("s_add_u32 s30, s30, 1\ns_cmp_lt_u32 s30, 14\ns_cbranch_scc1 L_k1_q")
    P.loop_end("L_k1_q")
    P("s_mov_b32 s50, 98304\ns_mov_b32 s51, 0")
    qchunk(dma_kv('k', "s50", "s51"), None)
    P("s_mov_b32 s50, 131072")
    qchunk(dma_kv('v', "s50", "s51"), None, last=True)
    P("s_waitcnt lgkmcnt(0)")
    qstep(1, None, 0, [])
    stamp(P, o, 66)
    for ks in range(8):
        base = S + 8*ks
        for i in range(4):
            P(f"v_cvt_pk_bf16_f32 v{QF+4*ks+i}, v{base+2*i}, v{base+2*i+1}")
    if o.get('dump') == 'q':
        P(f"v_lshlrev_b32 v{T}, 4, v{VL}\nv_add_u32 v{T+1}, 4096, v{T}")
        for ks in range(8):
            P(f"buffer_store_dwordx4 v[{QF+4*ks}:{QF+4*ks+3}], v{T + (ks>>2)}, s[20:23], 0 offen offset:{(ks&3)*1024}")
        P("s_waitcnt vmcnt(0)\ns_endpgm")
    VM, VLS, VA, VMC = 1, 2, 3, 4
    TT = 5
    P(f"v_mov_b32 v{VM}, 0xff7fffff\nv_mov_b32 v{VLS}, 0")
    for i in range(64): P(f"v_mov_b32 v{O+i}, 0")
    P(f"s_mov_b32 s52, {f32bits(SCALE_LOG2)}")
    P("s_mov_b32 s53, 98304")
    for i in range(8): P(f"v_add_u32 v{VKR+i}, s53, v{VKR+i}")
    P("s_sub_u32 s35, 131072, s28")
    for i in range(4): P(f"v_add_u32 v{VTR+i}, s35, v{VTR+i}")
    P("s_mov_b32 s54, 0")
    P("s_mov_b32 s51, 32768")
    P("s_mov_b32 s30, 0")

    def next_slot(reg):
        P(f"s_add_u32 {reg}, {reg}, 32768\ns_cmp_eq_u32 {reg}, 163840\ns_cselect_b32 {reg}, 0, {reg}")

    P.loop_begin("L_k1_att")
    P("s_waitcnt vmcnt(8)\ns_barrier")
    P("s_cmp_eq_u32 s30, 3\ns_cbranch_scc1 L_k1_nok")
    for x in dma_kv('k', "s54", "s51"): P(x)
    next_slot("s54")
    P("L_k1_nok:")
    LA = 4
    seq = [(kt, ks) for kt in range(4) for ks in range(8)]
    def kread(n):
        kt, ks = seq[n]
        return f"ds_read_b128 {ar(4*(n%8),4)}, v{VKR+ks} offset:{kt*8192}"
    for n in range(LA): P(kread(n))
    for n, (kt, ks) in enumerate(seq):
        c = "0" if ks == 0 else f"v[{S+16*kt}:{S+16*kt+15}]"
        P(f"{MF} v[{S+16*kt}:{S+16*kt+15}], {ar(4*(n%8),4)}, v[{QF+4*ks}:{QF+4*ks+3}], {c}")
        if n + LA < 32: P(kread(n+LA))
    P("s_add_u32 s34, s53, 65536\ns_cmp_ge_u32 s34, 163840\ns_cselect_b32 s35, 163840, 0\ns_sub_u32 s34, s34, s35\ns_sub_u32 s35, s34, s53\ns_mov_b32 s53, s34")
    for i in range(8): P(f"v_add_u32 v{VKR+i}, s35, v{VKR+i}")
    for p in range(4):
        P(f"v_max3_f32 v{TT+p}, v{S+16*p}, v{S+16*p+1}, v{S+16*p+2}")
    for i in range(3, 15, 2):
        for p in range(4):
            P(f"v_max3_f32 v{TT+p}, v{TT+p}, v{S+16*p+i}, v{S+16*p+i+1}")
    for p in range(4):
        P(f"v_max_f32 v{TT+p}, v{TT+p}, v{S+16*p+15}")
    P(f"v_max3_f32 v{TT}, v{TT}, v{TT+1}, v{TT+2}\nv_max3_f32 v{TT}, v{TT}, v{TT+3}, v{VM}")
    P(f"v_mov_b32 v{TT+1}, v{TT}")
    P(f"v_permlane32_swap_b32 v{TT}, v{TT+1}")
    P(f"v_max_f32 v{TT}, v{TT}, v{TT+1}")
    P(f"v_sub_f32 v{VA}, v{VM}, v{TT}\nv_mul_f32 v{VA}, s52, v{VA}\nv_exp_f32 v{VA}, v{VA}")
    P(f"v_mov_b32 v{VM}, v{TT}\nv_mul_f32 v{VMC}, s52, v{TT}")
    P(f"v_mul_f32 v{VLS}, v{VLS}, v{VA}")
    P(f"v_mov_b32 v{TT+4}, 0\nv_mov_b32 v{TT+5}, 0\nv_mov_b32 v{TT+6}, 0")
    for g in range(16):
        b = S + 4*g
        for i in range(4): P(f"v_fma_f32 v{b+i}, v{b+i}, s52, -v{VMC}")
        for i in range(4): P(f"v_exp_f32 v{b+i}, v{b+i}")
        for i in range(4): P(f"v_mul_f32 v{O+4*g+i}, v{O+4*g+i}, v{VA}")
        acc = [VLS, TT+4, TT+5, TT+6]
        for i in range(4): P(f"v_add_f32 v{acc[i]}, v{acc[i]}, v{b+i}")
        if g & 1:
            base = S + 8*(g >> 1)
            for i in range(4):
                P(f"v_cvt_pk_bf16_f32 v{base+i}, v{base+2*i}, v{base+2*i+1}")
    P(f"v_add_f32 v{TT+4}, v{TT+4}, v{TT+5}\nv_add_f32 v{VLS}, v{VLS}, v{TT+6}\nv_add_f32 v{VLS}, v{VLS}, v{TT+4}")
    P("s_cmp_eq_u32 s30, 3\ns_cbranch_scc1 L_k1_lastv")
    P("s_waitcnt vmcnt(8)\ns_barrier")
    for x in dma_kv('v', "s54", "s51"): P(x)
    next_slot("s54")
    P("s_add_u32 s51, s51, 32768")
    P("s_branch L_k1_pv")
    P("L_k1_lastv:")
    P("s_waitcnt vmcnt(0)\ns_barrier")
    P("L_k1_pv:")
    def vreads(ks):
        out = []
        for mt in range(4):
            out.append(tr_reads('a', 16*(ks & 1) + 4*mt, VTR, mt, 4096*ks))
        return out
    for mt in range(4):
        for x in vreads(0)[mt]: P(x)
    for ks in range(8):
        pb = S + 8*ks
        mf = [f"{MF} v[{O+16*mt}:{O+16*mt+15}], {ar(16*(ks&1)+4*mt,4)}, v[{pb}:{pb+3}], v[{O+16*mt}:{O+16*mt+15}]" for mt in range(4)]
        fill = vreads(ks+1) if ks < 7 else [[], [], [], []]
        interleave(P, mf, fill)
    P("s_add_u32 s34, s53, 32768\ns_cmp_ge_u32 s34, 163840\ns_cselect_b32 s35, 163840, 0\ns_sub_u32 s34, s34, s35")
    P("s_sub_u32 s55, s34, 65536\ns_cmp_lt_u32 s34, 65536\ns_cselect_b32 s35, 163840, 0\ns_add_u32 s55, s55, s35")
    P("s_sub_u32 s35, s34, s55")
    for i in range(4): P(f"v_add_u32 v{VTR+i}, s35, v{VTR+i}")
    P("s_add_u32 s30, s30, 1\ns_cmp_lt_u32 s30, 4\ns_cbranch_scc1 L_k1_att")
    P.loop_end("L_k1_att")
    stamp(P, o, 68)
    P(f"v_mov_b32 v{TT}, v{VLS}")
    P(f"v_permlane32_swap_b32 v{VLS}, v{TT}")
    P(f"v_add_f32 v{VLS}, v{VLS}, v{TT}\nv_rcp_f32 v{VLS}, v{VLS}")
    P(f"v_lshlrev_b32 v{TT}, 4, v{VL}\nv_add_u32 v{TT+1}, 4096, v{TT}")
    for ks in range(8):
        base = O + 8*ks
        for i in range(8): P(f"v_mul_f32 v{base+i}, v{base+i}, v{VLS}")
        d = S + 4*ks
        for i in range(4): P(f"v_cvt_pk_bf16_f32 v{d+i}, v{base+2*i}, v{base+2*i+1}")
        P(f"buffer_store_dwordx4 v[{d}:{d+3}], v{TT + (ks>>2)}, s[20:23], 0 offen offset:{(ks&3)*1024} {auxo}")
    if o.get('prof'):
        P("s_waitcnt vmcnt(0)")
        stamp(P, o, 70)
        prof_out(P, VL, 6, list(range(60, 72, 2)))
    P("L_k1_end:\ns_endpgm")
    return name, P, dict(vgpr=512, accum=256, sgpr=96)

def prof_out(P, VL, n, slots):
    P("s_waitcnt lgkmcnt(0)")
    P(f"s_lshl_b32 s46, s2, 2\ns_add_u32 s46, s46, s24\ns_lshl_b32 s46, s46, 6\ns_add_u32 s46, s46, {WS_PROF}")
    P("s_mov_b32 s48, s44\ns_mov_b32 s49, s45")
    add64(P, 48, 49, "s46")
    P(f"v_cmp_eq_u32 vcc, 0, v{VL}\ns_and_saveexec_b64 s[72:73], vcc")
    P("v_mov_b32 v2, 0")
    for i, s in enumerate(slots):
        P(f"v_mov_b32 v4, s{s}\nv_mov_b32 v5, s{s+1}\nglobal_store_dwordx2 v2, v[4:5], s[48:49] offset:{8*i}")
    P("s_waitcnt vmcnt(0)")

def k2(o):
    P = Prog()
    name = "mha_k2_kernel"
    auxw = o.get('aux_wo', ''); auxo = o.get('aux_ord', ''); auxp = o.get('aux_p', '')
    VL, VW, VTR, VO = 30, 5, 13, 1
    ACC = 64
    OF = 128
    T = 192
    P(f"{name}:")
    P("s_cmp_ge_u32 s2, 256\ns_cbranch_scc1 L_k2_end")
    stamp(P, o, 60)
    P("s_load_dwordx2 s[36:37], s[0:1], 32\ns_load_dwordx2 s[44:45], s[0:1], 56")
    lane_common(P, VL)
    P("s_and_b32 s3, s2, 7\ns_lshr_b32 s34, s2, 3")
    P("s_and_b32 s25, s3, 1\ns_lshl_b32 s25, s25, 2\ns_and_b32 s35, s34, 3\ns_add_u32 s25, s25, s35")
    P("s_lshr_b32 s26, s3, 1")
    P("s_lshr_b32 s46, s34, 2\ns_mov_b32 s28, s46")
    if o.get('rot', 1):
        P("s_lshl_b32 s27, s35, 2\ns_lshl_b32 s46, s46, 1\ns_add_u32 s27, s27, s46\ns_and_b32 s27, s27, 15")
    else:
        P("s_mov_b32 s27, 0")
    t0, t1, t2, t3 = T, T+1, T+2, T+3
    P(f"v_lshrrev_b32 v{t1}, 4, v{VL}\nv_and_b32 v{t0}, 15, v{VL}")
    P(f"v_lshlrev_b32 v{t2}, 2, v{t1}\nv_xor_b32 v{t2}, v{t2}, v{t0}\nv_lshlrev_b32 v{t2}, 4, v{t2}")
    P(f"v_mov_b32 v{t3}, s24\nv_lshl_add_u32 v{t3}, v{t3}, 4, v{t1}")
    P(f"v_lshl_add_u32 v{VW}, v{t3}, 11, v{t2}")
    for pp in range(1, 4): P(f"v_add_u32 v{VW+pp}, {pp*(4*2048-1024)}, v{VW}")
    P(f"v_lshlrev_b32 v{VO}, 4, v{VL}")
    tr_addr(P, VL, VTR, t0, t1, t2)
    P("s_waitcnt lgkmcnt(0)")
    P("s_lshl_b32 s46, s26, 21\ns_lshl_b32 s47, s28, 8\ns_add_u32 s46, s46, s47")
    add64(P, 36, 37, "s46"); srd(P, 8, 36, 37, 0); P(f"s_sub_u32 s10, {4096*2048}, s46")
    P("s_lshl_b32 s46, s25, 2\ns_add_u32 s46, s46, s24\ns_lshl_b32 s46, s46, 8\ns_lshl_b32 s47, s26, 6\ns_add_u32 s46, s46, s47\ns_lshl_b32 s46, s46, 10")
    P("s_mov_b32 s48, s44\ns_mov_b32 s49, s45"); add64(P, 48, 49, "s46"); srd(P, 4, 48, 49, 65536)
    P("s_lshl_b32 s46, s25, 3\ns_add_u32 s46, s46, s28\ns_lshl_b32 s46, s46, 2\ns_add_u32 s46, s46, s26\ns_lshl_b32 s46, s46, 2\ns_add_u32 s46, s46, s24\ns_lshl_b32 s46, s46, 14")
    P(f"s_add_u32 s46, s46, {WS_PART}")
    P("s_mov_b32 s48, s44\ns_mov_b32 s49, s45"); add64(P, 48, 49, "s46"); srd(P, 20, 48, 49, 16384)
    P("s_lshl_b32 s31, s24, 12")

    def dmas(stage):
        w = [f"s_add_u32 m0, s31, {stage*16384}\ns_lshl_b32 s33, s27, 17\n"
             f"buffer_load_dwordx4 v{VW}, s[8:11], s33 offen {auxw} lds"]
        for pp in range(1, 4):
            w.append(f"buffer_load_dwordx4 v{VW+pp}, s[8:11], s33 offen offset:{pp*1024} {auxw} lds")
        ol = []
        for ks in range(4):
            d = OF + 16*stage + 4*ks
            pre = "s_lshl_b32 s32, s27, 12\n" if ks == 0 else ""
            off = f" offset:{ks*1024}" if ks else ""
            ol.append(pre + f"buffer_load_dwordx4 v[{d}:{d+3}], v{VO}, s[4:7], s32 offen{off} {auxo}")
        adv = "s_add_u32 s27, s27, 1\ns_and_b32 s27, s27, 15"
        return w, ol, adv
    for st in range(3):
        w, ol, adv = dmas(st)
        for x in w + ol: P(x)
        P(adv)
    for i in range(64): P(f"v_mov_b32 v{ACC+i}, 0")
    for i in range(16): P(f"v_accvgpr_write_b32 a{16+i}, 0")
    for i in range(4): P(f"v_mov_b32 v{OF+16*3+12+i}, 0")
    P("s_mov_b32 s30, 0")
    stamp(P, o, 62)
    P("s_waitcnt vmcnt(16)\ns_barrier")
    stamp(P, o, 64)

    def step(use, bfrag, load, off, extra):
        mf = [f"{MF} v[{ACC+16*mt}:{ACC+16*mt+15}], {ar(16*use+4*mt,4)}, v[{bfrag}:{bfrag+3}], v[{ACC+16*mt}:{ACC+16*mt+15}]" for mt in range(4)]
        fill = [[] for _ in range(4)]
        if load is not None:
            for mt in range(4): fill[mt] += tr_reads('a', 16*load+4*mt, VTR, mt, off)
        for e in extra: fill[e[0]].append(e[1])
        interleave(P, mf, fill)

    def chunk(st, issue, wait):
        prev = (st + 3) % 4
        if issue:
            w, ol, adv = dmas(prev)
        else:
            w, ol, adv = [None]*4, [None]*4, None
        ex = lambda lst: [(p, x) for p, x in lst if x]
        step(1, OF+16*prev+12, 0, st*16384,        ex([(1, w[0]), (3, w[1])]))
        step(0, OF+16*st+0,    1, st*16384+4096,   ex([(0, ol[0]), (1, w[2]), (3, w[3])]))
        step(1, OF+16*st+4,    0, st*16384+8192,   ex([(0, ol[1]), (2, ol[2])]))
        step(0, OF+16*st+8,    1, st*16384+12288,  ex([(0, ol[3])]))
        if adv: P(adv)
        if wait is not None:
            P(f"s_waitcnt vmcnt({wait}) lgkmcnt(0)\ns_barrier")

    P.loop_begin("L_k2")
    for st in range(4): chunk(st, True, 16)
    P("s_add_u32 s30, s30, 1\ns_cmp_lt_u32 s30, 3\ns_cbranch_scc1 L_k2")
    P.loop_end("L_k2")
    chunk(0, True, 16)
    chunk(1, False, 8)
    chunk(2, False, 0)
    chunk(3, False, None)
    P("s_waitcnt lgkmcnt(0)")
    step(1, OF+16*3+12, None, 0, [])
    stamp(P, o, 66)
    for q in range(16):
        P(f"buffer_store_dwordx4 v[{ACC+4*q}:{ACC+4*q+3}], v{VO}, s[20:23], s31 offen offset:{(q&3)*1024} {auxp}".replace("s31", f"s{56+(q>>2)}"))
    if o.get('prof'):
        P("s_waitcnt vmcnt(0)")
        stamp(P, o, 68)
        stamp(P, o, 70)
        prof_out(P, VL, 6, list(range(60, 72, 2)))
    P("L_k2_end:\ns_endpgm")
    idx = next(i for i, it in enumerate(P.items) if not isinstance(it, tuple) and it.text.startswith("s_lshl_b32 s31, s24, 12"))
    Q = Prog(); Q("s_mov_b32 s56, 0\ns_mov_b32 s57, 4096\ns_mov_b32 s58, 8192\ns_mov_b32 s59, 12288")
    P.items[idx:idx] = Q.items
    return name, P, dict(vgpr=512, accum=256, sgpr=96)

def k3(o):
    P = Prog()
    name = "mha_k3_kernel"
    VL = 30
    P(f"{name}:")
    P("s_cmp_ge_u32 s2, 256\ns_cbranch_scc1 L_k3_end")
    P("s_load_dwordx2 s[36:37], s[0:1], 40\ns_load_dwordx2 s[44:45], s[0:1], 56")
    lane_common(P, VL)
    P("s_lshr_b32 s25, s2, 5")
    P("s_bfe_u32 s28, s2, 0x30002")
    P("s_and_b32 s26, s2, 3")
    P(f"v_lshlrev_b32 v1, 4, v{VL}")
    P("s_waitcnt lgkmcnt(0)")
    P("s_lshl_b32 s46, s25, 3\ns_add_u32 s46, s46, s28\ns_lshl_b32 s46, s46, 4\ns_add_u32 s46, s46, s24\ns_lshl_b32 s46, s46, 14")
    P(f"s_lshl_b32 s47, s26, 12\ns_add_u32 s46, s46, s47\ns_add_u32 s46, s46, {WS_PART}")
    add64(P, 44, 45, "s46"); srd(P, 4, 44, 45, 3*65536+4096)
    srd(P, 8, 36, 37, 1024*2048)
    for hg in range(4):
        P(f"s_mov_b32 s{50+hg}, {hg*65536}")
    for hg in range(4):
        for q in range(4):
            d = 32 + 16*hg + 4*q
            P(f"buffer_load_dwordx4 v[{d}:{d+3}], v1, s[4:7], s{50+hg} offen offset:{q*1024}")
    P(f"v_and_b32 v2, 31, v{VL}\nv_lshrrev_b32 v3, 5, v{VL}")
    P("s_lshl_b32 s46, s25, 7\ns_lshl_b32 s47, s24, 5\ns_add_u32 s46, s46, s47")
    P("v_add_u32 v2, s46, v2\nv_lshlrev_b32 v2, 11, v2")
    P("v_lshl_add_u32 v2, v3, 4, v2")
    P("s_lshl_b32 s46, s28, 8\ns_lshl_b32 s47, s26, 6\ns_add_u32 s46, s46, s47")
    P("v_add_u32 v2, s46, v2")
    P("s_waitcnt vmcnt(8)")
    for i in range(16): P(f"v_add_f32 v{32+i}, v{32+i}, v{48+i}")
    P("s_waitcnt vmcnt(4)")
    for i in range(16): P(f"v_add_f32 v{32+i}, v{32+i}, v{64+i}")
    P("s_waitcnt vmcnt(0)")
    for i in range(16): P(f"v_add_f32 v{32+i}, v{32+i}, v{80+i}")
    for sp in range(2):
        for i in range(4): P(f"v_cvt_pk_bf16_f32 v{8+4*sp+i}, v{32+8*sp+2*i}, v{32+8*sp+2*i+1}")
        P(f"buffer_store_dwordx4 v[{8+4*sp}:{11+4*sp}], v2, s[8:11], 0 offen offset:{32*sp}")
    P("L_k3_end:\ns_endpgm")
    return name, P, dict(vgpr=128, accum=128, sgpr=96)

def build(o, kernels=("k1", "k2", "k3")):
    lds = {"k1": 163840, "k2": 65536 + o.get('k2_lds_pad', 32768), "k3": 0}
    hdr = open("standalone__mha_block_cached__near_ridge.s.ref").read().split("; Override launch")[0]
    out = [hdr.rstrip()]
    parts = []
    for k in kernels:
        name, P, res = globals()[k](o)
        parts.append((k, name, P, res))
        out.append(f"; @launch kernel={name} grid=(256,1,1) block=(256,1,1) lds={lds[k]}")
    out.append('.amdgcn_target "amdgcn-amd-amdhsa--gfx950"')
    out.append(".text")
    for k, name, P, res in parts:
        out.append(f".globl {name}\n.p2align 8\n.type {name},@function")
        out.append(P.finalize(verbose=o.get('verbose', False)))
    out.append('.section .rodata,"a"')
    for k, name, P, res in parts:
        out.append(f""".p2align 6
.amdhsa_kernel {name}
  .amdhsa_next_free_vgpr {res['vgpr']}
  .amdhsa_next_free_sgpr {res['sgpr']}
  .amdhsa_accum_offset {res['accum']}
  .amdhsa_group_segment_fixed_size 0
  .amdhsa_kernarg_size 64
  .amdhsa_user_sgpr_count 2
  .amdhsa_user_sgpr_kernarg_segment_ptr 1
  .amdhsa_system_sgpr_workgroup_id_x 1
  .amdhsa_float_denorm_mode_32 3
.end_amdhsa_kernel""")
    return "\n".join(out) + "\n"

if __name__ == "__main__":
    o = dict(verbose=True)
    for a in sys.argv[2:]:
        k, v = a.split('=', 1)
        o[k] = int(v) if v.lstrip('-').isdigit() else v
    open(sys.argv[1], "w").write(build(o))
```

```python
import sys, gen1, re
def variant(path, o, order):
    asm = gen1.build(o)
    lines = asm.split("\n")
    launch = {}
    rest = []
    for l in lines:
        m = re.match(r"; @launch kernel=mha_(k\d)_kernel", l)
        if m: launch[m.group(1)] = l
        else: rest.append(l)
    idx = next(i for i, l in enumerate(rest) if l.startswith(".amdgcn_target"))
    rest[idx:idx] = [launch[k] for k in order]
    open(path, "w").write("\n".join(rest))
if __name__ == "__main__":
    variant("v_a.s", {}, ["k1","k2","k3"])
    variant("v_b.s", dict(aux_kv=''), ["k1","k2","k3"])
    variant("v_c.s", dict(aux_q='nt', aux_wo='nt'), ["k1","k2","k3"])
    variant("v_d.s", {}, ["k1","k1","k2","k3"])
    variant("v_e.s", {}, ["k1","k2","k2","k3"])
    variant("v_f.s", {}, ["k1","k2","k3","k3"])
```

```python
import math, sys, struct
from asmlib import Prog

SCALE_LOG2 = math.log2(math.e) / math.sqrt(128.0)
def f32bits(x): return struct.unpack('<I', struct.pack('<f', x))[0]

NAME = "standalone__mha_block_cached__near_ridge_kernel"
WS_O = 0
WS_PART = 16 << 20
WS_FLAG = 48 << 20
FLAG2 = 8192
EPOCH = 32768
WS_PROF = 64 << 20
MF = "v_mfma_f32_32x32x16_bf16"
SPIN = 1 << 18

def vr(b, n=1): return f"v{b}" if n == 1 else f"v[{b}:{b+n-1}]"
def ar(b, n=1): return f"a{b}" if n == 1 else f"a[{b}:{b+n-1}]"

def srd(P, d, lo, hi, size):
    P(f"s_mov_b32 s{d}, s{lo}\ns_and_b32 s{d+1}, s{hi}, 0xffff\ns_mov_b32 s{d+2}, {size}\ns_mov_b32 s{d+3}, 0x20000")

def srd_at(P, d, lo, hi, off, size):
    P(f"s_add_u32 s{d}, s{lo}, {off}\ns_addc_u32 s{d+1}, s{hi}, 0\ns_and_b32 s{d+1}, s{d+1}, 0xffff\ns_mov_b32 s{d+2}, {size}\ns_mov_b32 s{d+3}, 0x20000")

def interleave(P, mf, fill):
    for i, m in enumerate(mf):
        P(m)
        if i < len(fill):
            for f in fill[i]:
                if f: P(f)

def tr_reads(dst, vaddr, off, jstep, kind='a'):
    f = ar if kind == 'a' else vr
    return [f"ds_read_b64_tr_b16 {f(dst,2)}, v{vaddr} offset:{off}",
            f"ds_read_b64_tr_b16 {f(dst+2,2)}, v{vaddr} offset:{off+jstep}"]

class VM:
    def __init__(self): self.q = []
    def add(self, tag, n=1): self.q += [tag]*n
    def after(self, tag):
        idx = max(i for i, t in enumerate(self.q) if t == tag)
        return len(self.q) - 1 - idx

NSTAMP = 12
def gen(o):
    P = Prog()
    auxq = o.get('aux_q', ''); auxkv = o.get('aux_kv', 'nt'); auxwo = o.get('aux_wo', '')
    prof = o.get('prof', 0)
    def stamp(i):
        if prof: P(f"s_memrealtime s[{64+2*i}:{65+2*i}]" if prof != 4 else f"s_memtime s[{64+2*i}:{65+2*i}]")
    VL = 30
    VX, VW, VXR, VTR, VKR, VK, VV = 1, 5, 9, 13, 17, 25, 29
    QF, S, T, O = 32, 64, 128, 192
    sW, sB, sH, sROT, sBI, sHI, sHG = "s24", "s25", "s26", "s27", "s56", "s57", "s58"
    X_, K_, V_, WQ_, WO_, OUT_, DBG_, WS_ = 36, 38, 40, 42, 88, 90, 92, 94
    P(f"{NAME}:")
    P("s_cmp_ge_u32 s2, 256\ns_cbranch_scc1 L_end")
    stamp(0)
    P("s_load_dwordx8 s[36:43], s[0:1], 0\ns_load_dwordx8 s[88:95], s[0:1], 32")
    P(f"v_lshrrev_b32 v1, 6, v0\nv_and_b32 v{VL}, 63, v0\ns_nop 0\nv_readfirstlane_b32 {sW}, v1")
    P("s_and_b32 s3, s2, 7\ns_lshr_b32 s34, s2, 3")
    P(f"s_and_b32 {sBI}, s34, 3\ns_lshr_b32 {sHI}, s34, 2\ns_lshr_b32 {sHG}, s3, 1")
    P(f"s_and_b32 {sB}, s3, 1\ns_lshl_b32 {sB}, {sB}, 2\ns_add_u32 {sB}, {sB}, {sBI}")
    P(f"s_lshl_b32 {sH}, {sHG}, 3\ns_add_u32 {sH}, {sH}, {sHI}")
    P(f"s_lshl_b32 {sROT}, {sBI}, 2\ns_lshl_b32 s46, {sHI}, 1\ns_add_u32 {sROT}, {sROT}, s46\ns_and_b32 {sROT}, {sROT}, 15")
    t0, t1, t2, t3 = T, T+1, T+2, T+3
    P(f"v_lshrrev_b32 v{t0}, 3, v{VL}\nv_mov_b32 v{t3}, {sW}")
    P(f"v_lshl_add_u32 v{t0}, v{t3}, 5, v{t0}\nv_lshlrev_b32 v{t0}, 11, v{t0}")
    P(f"v_lshrrev_b32 v{t1}, 4, v{VL}\nv_and_b32 v{t2}, 7, v{VL}\nv_xor_b32 v{t2}, v{t2}, v{t1}")
    for pp in range(4):
        P(f"v_xor_b32 v{VX+pp}, {4*(pp&1)}, v{t2}")
        P(f"v_lshl_add_u32 v{VX+pp}, v{VX+pp}, 4, v{t0}")
        if pp: P(f"v_add_u32 v{VX+pp}, {pp*15360}, v{VX+pp}")
    P(f"v_and_b32 v{t0}, 15, v{VL}\nv_lshlrev_b32 v{t2}, 2, v{t1}\nv_xor_b32 v{t2}, v{t2}, v{t0}\nv_lshlrev_b32 v{t2}, 4, v{t2}")
    P(f"v_lshl_add_u32 v{VV}, v{t1}, 8, v{t2}")
    P(f"v_lshl_add_u32 v{t3}, v{t3}, 4, v{t1}\nv_lshl_add_u32 v{VW}, v{t3}, 13, v{t2}")
    for pp in range(1, 4): P(f"v_add_u32 v{VW+pp}, {pp*(4*8192-1024)}, v{VW}")
    P("s_waitcnt lgkmcnt(0)")
    P(f"s_lshl_b32 s46, {sB}, 18"); srd_at(P, 4, X_, X_+1, "s46", 262144)
    P(f"s_lshl_b32 s46, {sH}, 8"); srd_at(P, 8, WQ_, WQ_+1, "s46", 0); P(f"s_sub_u32 s10, {1024*8192}, s46")
    P(f"s_lshl_b32 s31, {sW}, 12")

    def dma_chunk(stage):
        x = [f"s_add_u32 m0, {stage}, s31\ns_lshl_b32 s32, {sROT}, 7\nbuffer_load_dwordx4 v{VX}, s[4:7], s32 offen {auxq} lds"]
        for pp in range(1, 4): x.append(f"buffer_load_dwordx4 v{VX+pp}, s[4:7], s32 offen offset:{pp*1024} {auxq} lds")
        w = [f"s_add_u32 s33, {stage}, s31\ns_add_u32 m0, s33, 16384\ns_lshl_b32 s33, {sROT}, 19\nbuffer_load_dwordx4 v{VW}, s[8:11], s33 offen {auxq} lds"]
        for pp in range(1, 4): w.append(f"buffer_load_dwordx4 v{VW+pp}, s[8:11], s33 offen offset:{pp*1024} {auxq} lds")
        return x + w, f"s_add_u32 {sROT}, {sROT}, 1\ns_and_b32 {sROT}, {sROT}, 15"

    for st in (0, 32768):
        P(f"s_mov_b32 s29, {st}")
        d, adv = dma_chunk("s29")
        for x in d: P(x)
        P(adv)
    P("s_mov_b32 s29, 65536")
    P(f"v_mov_b32 v{T+4}, {WS_FLAG + EPOCH}")
    P(f"s_or_b32 s46, s2, {sW}\ns_cmp_lg_u32 s46, 0\ns_cbranch_scc1 L_noepoch")
    P(f"global_load_dwordx2 v[{T+6}:{T+7}], v{T+4}, s[{WS_}:{WS_+1}] sc1")
    P("L_noepoch:")
    P(f"v_and_b32 v{t0}, 15, v{VL}")
    for pp in range(4):
        P(f"v_add_u32 v{t2}, {4*pp}, v{t1}\nv_xor_b32 v{t2}, v{t2}, v{t0}\nv_lshlrev_b32 v{t2}, 4, v{t2}\nv_lshl_add_u32 v{VK+pp}, v{t1}, 8, v{t2}")
    P(f"v_and_b32 v{t0}, 31, v{VL}\nv_lshrrev_b32 v{t1}, 5, v{VL}")
    P(f"v_bfe_u32 v{t2}, v{VL}, 1, 3\nv_xor_b32 v{t2}, v{t2}, v{t1}\nv_lshlrev_b32 v{t2}, 4, v{t2}")
    P(f"v_mov_b32 v{t3}, {sW}\nv_lshl_add_u32 v{t3}, v{t3}, 5, v{t0}\nv_lshl_add_u32 v{VXR}, v{t3}, 7, v{t2}")
    for ks in range(1, 4): P(f"v_xor_b32 v{VXR+ks}, {ks*32}, v{VXR}")
    P(f"v_and_b32 v{t2}, 0x13, v{t0}\nv_bfe_u32 v{t3}, v{t0}, 2, 1\nv_lshl_add_u32 v{t2}, v{t3}, 3, v{t2}")
    P(f"v_bfe_u32 v{t3}, v{t0}, 3, 1\nv_lshl_add_u32 v{t2}, v{t3}, 2, v{t2}")
    P(f"v_and_b32 v{t3}, 15, v{t2}\nv_xor_b32 v{t3}, v{t3}, v{t1}\nv_lshlrev_b32 v{t3}, 4, v{t3}\nv_lshl_add_u32 v{VKR}, v{t2}, 8, v{t3}")
    for ks in range(1, 8): P(f"v_xor_b32 v{VKR+ks}, {ks*32}, v{VKR}")
    P(f"v_lshrrev_b32 v{t0}, 5, v{VL}\nv_lshlrev_b32 v{t0}, 11, v{t0}\nv_bfe_u32 v{t1}, v{VL}, 2, 2")
    P(f"v_lshl_add_u32 v{t0}, v{t1}, 8, v{t0}\nv_lshl_add_u32 v{t0}, v{t1}, 6, v{t0}")
    P(f"v_bfe_u32 v{t2}, v{VL}, 4, 1\nv_lshl_add_u32 v{t0}, v{t2}, 5, v{t0}")
    P(f"v_and_b32 v{t2}, 1, v{VL}\nv_lshl_add_u32 v{t0}, v{t2}, 4, v{t0}")
    P(f"v_bfe_u32 v{t2}, v{VL}, 1, 1\nv_lshl_add_u32 v{VTR}, v{t2}, 3, v{t0}")
    for mt in range(1, 4): P(f"v_xor_b32 v{VTR+mt}, {mt*64}, v{VTR}")
    P(f"s_lshl_b32 s46, {sB}, 5\ns_add_u32 s46, s46, {sH}\ns_lshl_b32 s46, s46, 17")
    srd_at(P, 12, K_, K_+1, "s46", 131072); srd_at(P, 16, V_, V_+1, "s46", 131072)
    P(f"s_lshl_b32 s46, {sB}, 2\ns_add_u32 s46, s46, {sW}\ns_lshl_b32 s46, s46, 8\ns_lshl_b32 s47, {sH}, 3\ns_add_u32 s46, s46, s47\ns_lshl_b32 s46, s46, 10")
    srd_at(P, 20, WS_, WS_+1, "s46", 8192)

    def dma_kv(kind, slot, off):
        out = []
        for g in range(2):
            pre = f"s_lshl_b32 s33, {sW}, 13\ns_add_u32 s33, s33, {g*4096}\ns_add_u32 m0, {slot}, s33\ns_add_u32 s33, s33, {off}\n"
            for pp in range(4):
                v = VK + pp if kind == 'k' else VV
                d = 12 if kind == 'k' else 16
                offs = f" offset:{pp*1024}" if pp else ""
                out.append((pre if pp == 0 else "") + f"buffer_load_dwordx4 v{v}, s[{d}:{d+3}], s33 offen{offs} {auxkv} lds")
        return out

    for i in range(64): P(f"v_mov_b32 v{S+i}, 0")
    for i in range(40): P(f"v_accvgpr_write_b32 a{40+i}, 0")
    P("s_mov_b32 s28, 0\ns_mov_b32 s30, 0")
    stamp(1)
    P("s_waitcnt vmcnt(8)\ns_barrier")

    def set_reads(ks):
        lb = 20*ks
        out = [f"ds_read_b128 {ar(lb,4)}, v{VXR+ks}"]
        for mt in range(4): out += tr_reads(lb+4+4*mt, VTR+mt, 16384 + 4096*ks, 1024)
        return out
    def qstep(use, fill):
        ub = 20*use
        mf = [f"{MF} v[{S+16*mt}:{S+16*mt+15}], {ar(ub+4+4*mt,4)}, {ar(ub,4)}, v[{S+16*mt}:{S+16*mt+15}]" for mt in range(4)]
        interleave(P, mf, fill)
    def qchunk(dmas, adv, last=False):
        rd = set_reads(0) + set_reads(1) + set_reads(2) + set_reads(3)
        gaps = [[] for _ in range(16)]
        for g in range(12): gaps[g] += rd[3*g:3*g+3]
        for i, g in enumerate([1, 3, 5, 7, 9, 11, 13, 15]): gaps[g].append(dmas[i])
        gaps[12].append("s_add_u32 s34, s28, 32768\ns_cmp_eq_u32 s34, 98304\ns_cselect_b32 s34, 0, s34\ns_sub_u32 s35, s34, s28\ns_mov_b32 s28, s34")
        for i in range(4): gaps[12 + i].append(f"v_add_u32 v{VXR+i}, s35, v{VXR+i}\nv_add_u32 v{VTR+i}, s35, v{VTR+i}")
        gaps[15].append((adv + "\n" if adv else "") + "s_add_u32 s29, s29, 32768\ns_cmp_eq_u32 s29, 98304\ns_cselect_b32 s29, 0, s29")
        qstep(2, gaps[0:4]); qstep(3, gaps[4:8]); qstep(0, gaps[8:12]); qstep(1, gaps[12:16])
        if not last: P("s_waitcnt vmcnt(8) lgkmcnt(0)\ns_barrier")

    P.loop_begin("L_q")
    d, adv = dma_chunk("s29")
    qchunk(d, adv)
    P("s_add_u32 s30, s30, 1\ns_cmp_lt_u32 s30, 14\ns_cbranch_scc1 L_q")
    P.loop_end("L_q")
    P("s_mov_b32 s50, 98304\ns_mov_b32 s51, 0")
    qchunk(dma_kv('k', "s50", "s51"), None)
    P("s_mov_b32 s50, 131072")
    qchunk(dma_kv('v', "s50", "s51"), None, last=True)
    P("s_waitcnt lgkmcnt(0)")
    qstep(2, []); qstep(3, [])
    stamp(2)
    P(f"s_or_b32 s46, s2, {sW}\ns_cmp_lg_u32 s46, 0\ns_cbranch_scc1 L_nopub")
    P(f"v_add_co_u32 v{T+6}, vcc, 1, v{T+6}\ns_nop 1\nv_addc_co_u32 v{T+7}, vcc, 0, v{T+7}, vcc")
    P(f"v_cmp_eq_u32 vcc, 0, v{T+6}\ns_nop 1\nv_cndmask_b32 v{T+6}, v{T+6}, 1.0, vcc")
    P(f"v_cmp_eq_u32 vcc, 0, v{VL}\ns_and_saveexec_b64 s[46:47], vcc")
    P(f"global_store_dwordx2 v{T+4}, v[{T+6}:{T+7}], s[{WS_}:{WS_+1}] sc1")
    P(f"v_mov_b32 v{T+5}, 0\nglobal_store_dwordx2 v{T+5}, v[{T+6}:{T+7}], s[{DBG_}:{DBG_+1}] sc1")
    P("s_mov_b64 exec, s[46:47]")
    P("L_nopub:")
    for ks in range(8):
        base = S + 8*ks
        for i in range(4): P(f"v_cvt_pk_bf16_f32 v{QF+4*ks+i}, v{base+2*i}, v{base+2*i+1}")

    VMX, VLS, VA, VMC, TT = 1, 2, 3, 4, 5
    NN = T
    P(f"v_mov_b32 v{VMX}, 0xff7fffff\nv_mov_b32 v{VLS}, 0")
    for i in range(64): P(f"v_mov_b32 v{O+i}, 0")
    P(f"s_mov_b32 s52, {f32bits(SCALE_LOG2)}")
    P("s_mov_b32 s53, 98304")
    for i in range(8): P(f"v_add_u32 v{VKR+i}, s53, v{VKR+i}")
    P("s_sub_u32 s35, 131072, s28")
    for i in range(4): P(f"v_add_u32 v{VTR+i}, s35, v{VTR+i}")
    P("s_mov_b32 s54, 0\ns_mov_b32 s51, 32768\ns_mov_b32 s30, 0")
    NEXT54 = "s_add_u32 s54, s54, 32768\ns_cmp_eq_u32 s54, 163840\ns_cselect_b32 s54, 0, s54"
    def guarded(label, lines):
        P(f"s_cmp_eq_u32 s30, 3\ns_cbranch_scc1 {label}")
        for x in lines: P(x)
        P(f"{label}:")

    P.loop_begin("L_att")
    kd = dma_kv('k', "s54", "s51")
    P("s_waitcnt vmcnt(8)\ns_barrier")
    guarded("L_nok1", kd[:4])
    seq = [(kt, ks) for kt in range(4) for ks in range(8)]
    LA = 4
    def kread(n):
        kt, ks = seq[n]
        return f"ds_read_b128 {ar(4*(n%8),4)}, v{VKR+ks} offset:{kt*8192}"
    for n in range(LA): P(kread(n))
    for n, (kt, ks) in enumerate(seq):
        c = "0" if ks == 0 else f"v[{S+16*kt}:{S+16*kt+15}]"
        P(f"{MF} v[{S+16*kt}:{S+16*kt+15}], {ar(4*(n%8),4)}, v[{QF+4*ks}:{QF+4*ks+3}], {c}")
        if n + LA < 32: P(kread(n+LA))
    P("s_add_u32 s34, s53, 65536\ns_cmp_ge_u32 s34, 163840\ns_cselect_b32 s35, 163840, 0\ns_sub_u32 s34, s34, s35\ns_sub_u32 s35, s34, s53\ns_mov_b32 s53, s34")
    for i in range(8): P(f"v_add_u32 v{VKR+i}, s35, v{VKR+i}")
    guarded("L_nok2", kd[4:] + [NEXT54])
    vd = dma_kv('v', "s54", "s51")
    for p in range(4): P(f"v_max3_f32 v{TT+p}, v{S+16*p}, v{S+16*p+1}, v{S+16*p+2}")
    for i in range(3, 15, 2):
        for p in range(4): P(f"v_max3_f32 v{TT+p}, v{TT+p}, v{S+16*p+i}, v{S+16*p+i+1}")
    for p in range(4): P(f"v_max_f32 v{TT+p}, v{TT+p}, v{S+16*p+15}")
    P(f"v_max3_f32 v{TT}, v{TT}, v{TT+1}, v{TT+2}\nv_max3_f32 v{TT}, v{TT}, v{TT+3}, v{VMX}")
    P(f"v_mov_b32 v{TT+1}, v{TT}\nv_permlane32_swap_b32 v{TT}, v{TT+1}\nv_max_f32 v{TT}, v{TT}, v{TT+1}")
    P(f"v_sub_f32 v{VA}, v{VMX}, v{TT}\nv_mul_f32 v{VA}, s52, v{VA}\nv_exp_f32 v{VA}, v{VA}")
    P(f"v_mov_b32 v{VMX}, v{TT}\nv_mul_f32 v{VMC}, s52, v{TT}\nv_mul_f32 v{VLS}, v{VLS}, v{VA}")
    P(f"v_mov_b32 v{TT+4}, 0\nv_mov_b32 v{TT+5}, 0\nv_mov_b32 v{TT+6}, 0")
    for g in range(16):
        b = S + 4*g
        if g == 6: guarded("L_nov1", vd[:4])
        for i in range(4): P(f"v_fma_f32 v{b+i}, v{b+i}, s52, -v{VMC}")
        for i in range(4): P(f"v_exp_f32 v{b+i}, v{b+i}")
        for i in range(4): P(f"v_mul_f32 v{O+4*g+i}, v{O+4*g+i}, v{VA}")
        acc = [VLS, TT+4, TT+5, TT+6]
        for i in range(4): P(f"v_add_f32 v{acc[i]}, v{acc[i]}, v{b+i}")
        if g & 1:
            base = S + 8*(g >> 1)
            for i in range(4): P(f"v_cvt_pk_bf16_f32 v{base+i}, v{base+2*i}, v{base+2*i+1}")
    P(f"v_add_f32 v{TT+4}, v{TT+4}, v{TT+5}\nv_add_f32 v{VLS}, v{VLS}, v{TT+6}\nv_add_f32 v{VLS}, v{VLS}, v{TT+4}")
    P("s_cmp_eq_u32 s30, 3\ns_cbranch_scc1 L_lastv")
    P("s_waitcnt vmcnt(12)\ns_barrier")
    for x in vd[4:]: P(x)
    P(NEXT54 + "\ns_add_u32 s51, s51, 32768\ns_branch L_pv")
    P("L_lastv:")
    P(f"v_mov_b32 v{TT}, 0\nglobal_load_dwordx2 v[{NN}:{NN+1}], v{TT}, s[{DBG_}:{DBG_+1}] sc1")
    P("s_waitcnt vmcnt(0)\ns_barrier")
    P("L_pv:")
    def vreads(ks): return [tr_reads(16*(ks & 1) + 4*mt, VTR+mt, 4096*ks, 1024) for mt in range(4)]
    for r in vreads(0):
        for x in r: P(x)
    for ks in range(8):
        pb = S + 8*ks
        mf = [f"{MF} v[{O+16*mt}:{O+16*mt+15}], {ar(16*(ks&1)+4*mt,4)}, v[{pb}:{pb+3}], v[{O+16*mt}:{O+16*mt+15}]" for mt in range(4)]
        interleave(P, mf, vreads(ks+1) if ks < 7 else [])
    P("s_add_u32 s34, s53, 32768\ns_cmp_ge_u32 s34, 163840\ns_cselect_b32 s35, 163840, 0\ns_sub_u32 s34, s34, s35")
    P("s_sub_u32 s55, s34, 65536\ns_cmp_lt_u32 s34, 65536\ns_cselect_b32 s35, 163840, 0\ns_add_u32 s55, s55, s35\ns_sub_u32 s35, s34, s55")
    for i in range(4): P(f"v_add_u32 v{VTR+i}, s35, v{VTR+i}")
    P("s_add_u32 s30, s30, 1\ns_cmp_lt_u32 s30, 4\ns_cbranch_scc1 L_att")
    P.loop_end("L_att")
    stamp(3)

    vm = VM()
    sFH, sSH = "s59", "s60"
    P(f"s_lshr_b32 {sSH}, {sHG}, 1\ns_xor_b32 {sFH}, {sSH}, 1")
    P(f"s_lshl_b32 s46, {sHG}, 21\ns_lshl_b32 s47, {sHI}, 8\ns_add_u32 s46, s46, s47")
    srd_at(P, 8, WO_, WO_+1, "s46", 0); P(f"s_sub_u32 s10, {4096*2048}, s46")
    P(f"s_lshl_b32 s46, {sB}, 2\ns_add_u32 s46, s46, {sW}\ns_lshl_b32 s46, s46, 8\ns_lshl_b32 s47, {sHG}, 6\ns_add_u32 s46, s46, s47\ns_lshl_b32 s46, s46, 10")
    srd_at(P, 4, WS_, WS_+1, "s46", 65536)
    P(f"s_lshl_b32 s46, {sB}, 3\ns_add_u32 s46, s46, {sHI}\ns_lshl_b32 s61, s46, 7\ns_lshl_b32 s46, s46, 6\ns_add_u32 s46, s46, {sW}\ns_lshl_b32 s46, s46, 12\ns_add_u32 s46, s46, {WS_PART}")
    srd_at(P, 12, WS_, WS_+1, "s46", 249856)
    P(f"s_add_u32 s61, s61, {WS_FLAG + FLAG2}")
    P(f"s_lshl_b32 s62, {sB}, 2\ns_add_u32 s62, s62, {sHG}\ns_lshl_b32 s62, s62, 7\ns_add_u32 s62, s62, {WS_FLAG}")
    srd(P, 16, OUT_, OUT_+1, 1024*2048)
    VW2, VO = 13, 17
    VF, VS = 19, 25
    FA, ACC, RP = 128, 64, 160
    P(f"v_mov_b32 v{TT}, v{VLS}\nv_permlane32_swap_b32 v{VLS}, v{TT}\nv_add_f32 v{VLS}, v{VLS}, v{TT}\nv_rcp_f32 v{VLS}, v{VLS}")
    P(f"v_lshlrev_b32 v{VO}, 4, v{VL}\nv_add_u32 v{VO+1}, 4096, v{VO}")
    for ks in range(8):
        base = O + 8*ks
        for i in range(8): P(f"v_mul_f32 v{base+i}, v{base+i}, v{VLS}")
        d = S + 4*ks
        for i in range(4): P(f"v_cvt_pk_bf16_f32 v{d+i}, v{base+2*i}, v{base+2*i+1}")
        P(f"buffer_store_dwordx4 v[{d}:{d+3}], v{VO + (ks>>2)}, s[20:23], 0 offen offset:{(ks&3)*1024} sc1"); vm.add('ost')
    stamp(4)
    sNL, sNH = "s96", "s97"
    P(f"s_mov_b32 s63, 0\nL_nonce:\nv_readfirstlane_b32 {sNL}, v{NN}\nv_readfirstlane_b32 {sNH}, v{NN+1}")
    P(f"s_cmp_lg_u32 {sNL}, 0\ns_cbranch_scc1 L_nonce_ok\ns_add_u32 s63, s63, 1\ns_cmp_gt_u32 s63, {SPIN}\ns_cbranch_scc1 L_nonce_ok")
    P(f"v_mov_b32 v{TT}, 0\nglobal_load_dwordx2 v[{NN}:{NN+1}], v{TT}, s[{DBG_}:{DBG_+1}] sc1\ns_waitcnt vmcnt(0)\ns_branch L_nonce\nL_nonce_ok:")
    P(f"v_lshrrev_b32 v{TT}, 3, v{VL}\nv_mov_b32 v{TT+1}, {sW}\nv_lshl_add_u32 v{TT}, v{TT+1}, 5, v{TT}\nv_lshlrev_b32 v{TT}, 11, v{TT}")
    P(f"v_bfe_u32 v{TT+1}, v{VL}, 4, 1\nv_lshlrev_b32 v{TT+1}, 2, v{TT+1}\nv_and_b32 v{TT+2}, 7, v{VL}\nv_xor_b32 v{TT+1}, v{TT+1}, v{TT+2}")
    P(f"v_lshl_add_u32 v{VW2}, v{TT+1}, 4, v{TT}")
    for pp in range(1, 4): P(f"v_add_u32 v{VW2+pp}, {pp*15360}, v{VW2}")
    def wo_block(slot_expr_pre, half, tag):
        out = [slot_expr_pre + f"\ns_lshl_b32 s33, s33, 18\ns_lshl_b32 s34, {half}, 7\ns_add_u32 s33, s33, s34\n"
               f"buffer_load_dwordx4 v{VW2}, s[8:11], s33 offen {auxwo} lds"]
        for pp in range(1, 4): out.append(f"buffer_load_dwordx4 v{VW2+pp}, s[8:11], s33 offen offset:{pp*1024} {auxwo} lds")
        return out
    def f_block():
        pre = (f"s_lshl_b32 s34, {sBI}, 1\ns_add_u32 s34, s34, s63\ns_and_b32 s34, s34, 7\n"
               f"s_add_u32 s33, s34, {sHI}\ns_and_b32 s33, s33, 7\n"
               f"s_lshl_b32 s34, s34, 14\ns_add_u32 s34, s34, s31\ns_add_u32 m0, s34, 32768\ns_add_u32 s63, s63, 1")
        return wo_block(pre, sFH, 'F')
    P("s_mov_b32 s63, 0")
    for tt in range(2):
        for x in f_block(): P(x)
        vm.add('F', 4)
    for i in range(32): P(f"v_accvgpr_write_b32 a{i}, v{S+i}")
    P(f"v_lshrrev_b32 v{TT}, 5, v{VL}\nv_lshlrev_b32 v{TT}, 10, v{TT}\nv_bfe_u32 v{TT+1}, v{VL}, 2, 2\nv_lshl_add_u32 v{TT}, v{TT+1}, 7, v{TT}")
    P(f"v_bfe_u32 v{TT+1}, v{VL}, 3, 1\nv_lshl_add_u32 v{TT}, v{TT+1}, 6, v{TT}\nv_bfe_u32 v{TT+1}, v{VL}, 4, 1\nv_lshl_add_u32 v{TT}, v{TT+1}, 5, v{TT}")
    P(f"v_and_b32 v{TT+1}, 1, v{VL}\nv_lshl_add_u32 v{TT}, v{TT+1}, 4, v{TT}\nv_bfe_u32 v{TT+1}, v{VL}, 1, 1\nv_lshl_add_u32 v{TT}, v{TT+1}, 3, v{TT}")
    for g in range(3):
        P(f"v_add_u32 v{VF+2*g}, {65536*g}, v{TT}\nv_xor_b32 v{VF+2*g+1}, 64, v{VF+2*g}")
    P(f"s_and_b32 s46, {sHG}, 1\ns_xor_b32 s46, s46, 1\ns_lshl_b32 s46, s46, 6")
    P(f"v_xor_b32 v{VS}, s46, v{TT}\nv_add_u32 v{VS+1}, 65536, v{VS}")
    P(f"s_waitcnt vmcnt({vm.after('ost')})\ns_barrier")
    P(f"s_cmp_lg_u32 {sW}, 0\ns_cbranch_scc1 L_noflag1")
    P(f"s_lshl_b32 s46, {sHI}, 3\ns_add_u32 s46, s46, s62\nv_mov_b32 v{TT}, s46\nv_mov_b32 v{TT+1}, {sNL}\nv_mov_b32 v{TT+2}, {sNH}")
    P(f"s_mov_b64 s[46:47], exec\ns_mov_b64 exec, 1")
    P(f"global_store_dwordx2 v{TT}, v[{TT+1}:{TT+2}], s[{WS_}:{WS_+1}] sc1")
    P("s_mov_b64 exec, s[46:47]")
    P("L_noflag1:")
    stamp(5)
    for tt in range(2, 8):
        for x in f_block(): P(x)
    def poll(label, line_sreg, lane_mul, mask_expr):
        P(f"v_lshlrev_b32 v{TT}, 3, v{VL}\nv_add_u32 v{TT}, {line_sreg}, v{TT}")
        P(f"s_mov_b64 s[46:47], exec\n{mask_expr}\ns_mov_b64 exec, s[48:49]\ns_mov_b32 s63, 0")
        P(f"{label}:\nglobal_load_dwordx2 v[{TT+1}:{TT+2}], v{TT}, s[{WS_}:{WS_+1}] sc1\ns_waitcnt vmcnt(0)")
        P(f"v_cmp_eq_u32 vcc, {sNL}, v{TT+1}\nv_cmp_eq_u32 s[50:51], {sNH}, v{TT+2}\ns_nop 3\ns_and_b64 s[50:51], s[50:51], vcc")
        P(f"s_cmp_eq_u64 s[50:51], s[48:49]\ns_cbranch_scc1 {label}_ok\ns_add_u32 s63, s63, 1\ns_cmp_le_u32 s63, {SPIN}\ns_cbranch_scc1 {label}\n{label}_ok:")
        P("s_mov_b64 exec, s[46:47]")
    P(f"s_cmp_lg_u32 {sW}, 0\ns_cbranch_scc1 L_nopoll1")
    poll("L_poll1", "s62", 8, "s_mov_b64 s[48:49], 0xff")
    P("L_nopoll1:")
    P("s_waitcnt vmcnt(0)\ns_barrier")
    stamp(6)

    vm = VM()
    def o_loads(t):
        out = []
        for ks in range(8):
            pre = f"s_add_u32 s32, {sHI}, {t}\ns_and_b32 s32, s32, 7\ns_lshl_b32 s32, s32, 13\n" if ks == 0 else ""
            d = 32*t + 4*ks
            out.append(pre + f"buffer_load_dwordx4 a[{d}:{d+3}], v{VO + (ks>>2)}, s[4:7], s32 offen offset:{(ks&3)*1024} sc1")
        return out
    def s_block(t):
        pre = f"s_add_u32 s33, {sHI}, {t}\ns_and_b32 s33, s33, 7\ns_add_u32 m0, s31, {16384*t}"
        return wo_block(pre, sSH, 'S')
    def a_reads(s):
        t, ks = s >> 3, s & 7
        off = 32768 + 16384*t + 2048*ks
        g = off >> 16
        return [tr_reads(FA + 8*(s & 3) + 4*m, VF + 2*g + m, off - 65536*g, 512, 'v') for m in range(2)]
    for x in o_loads(1) + o_loads(2): P(x)
    vm.add('O1', 8); vm.add('O2', 8)
    LA = 3
    for s in range(LA):
        for r in a_reads(s):
            for x in r: P(x)
    sched = {0: (3, 0), 1: (4, 1), 2: (5, 2), 3: (6, 3), 4: (7, 4), 5: (None, 5), 6: (None, 6), 7: (None, 7)}
    for t in range(8):
        ot, st_ = sched[t]
        jobs = []
        if ot is not None: jobs += [('O%d' % ot, x) for x in o_loads(ot)]
        jobs += [('S%d' % st_, x) for x in s_block(st_)]
        if t >= 1: P(f"s_waitcnt vmcnt({vm.after('O%d' % t)})")
        for ks in range(8):
            s = 8*t + ks
            fb = FA + 8*(s & 3)
            mf = [f"{MF} v[{ACC+16*m}:{ACC+16*m+15}], v[{fb+4*m}:{fb+4*m+3}], a[{4*s}:{4*s+3}], " + ("0" if s == 0 else f"v[{ACC+16*m}:{ACC+16*m+15}]") for m in range(2)]
            fill = a_reads(s + LA) if s + LA < 64 else [[], []]
            fill = [list(fill[0]), list(fill[1])]
            n = len(jobs)
            for gi in range(2):
                lo = (n*(2*ks + gi)) // 16; hi = (n*(2*ks + gi + 1)) // 16
                for tag, x in jobs[lo:hi]:
                    fill[gi].append(x); vm.add(tag)
            interleave(P, mf, fill)
        if t in (1, 3, 5): P("s_barrier")
    stamp(7)
    def publish(acc, dest_sreg):
        P(f"s_lshl_b32 s32, {dest_sreg}, 4\ns_lshl_b32 s33, {sHG}, 2\ns_add_u32 s32, s32, s33\ns_lshl_b32 s32, s32, 12")
        for qd in range(4):
            P(f"buffer_store_dwordx4 v[{acc+4*qd}:{acc+4*qd+3}], v{VO}, s[12:15], s32 offen offset:{qd*1024} sc1"); vm.add('P')
    P(f"s_lshl_b32 s35, {sFH}, 1"); publish(ACC, "s35")
    P("s_add_u32 s35, s35, 1"); publish(ACC+16, "s35")
    P(f"s_waitcnt vmcnt({vm.after('S7')})\ns_barrier")
    VFL = 27
    P(f"s_lshl_b32 s35, {sFH}, 1\nv_add_u32 v{VFL}, s35, v{VL}\nv_lshlrev_b32 v{VFL}, 2, v{VFL}\nv_add_u32 v{VFL}, {sHG}, v{VFL}\nv_lshlrev_b32 v{VFL}, 3, v{VFL}\nv_add_u32 v{VFL}, s61, v{VFL}")
    P(f"v_mov_b32 v28, {sNL}\nv_mov_b32 v29, {sNH}")
    P("s_mov_b32 s30, 0\ns_mov_b64 s[98:99], 3")
    AB = ACC + 32
    def b_reads(s):
        t, ks = s >> 3, s & 7
        off = 16384*t + 2048*ks
        g = off >> 16
        return tr_reads(FA + 4*(s & 7), VS + g, off - 65536*g, 512, 'v')
    P.loop_begin("L_b")
    LB = 6
    for s in range(LB):
        for x in b_reads(s): P(x)
    for s in range(64):
        fb = FA + 4*(s & 7)
        P(f"{MF} v[{AB}:{AB+15}], v[{fb}:{fb+3}], a[{4*s}:{4*s+3}], " + ("0" if s == 0 else f"v[{AB}:{AB+15}]"))
        if s + LB < 64:
            for x in b_reads(s + LB): P(x)
        if s == o.get('b_flagpos', 40):
            P("s_waitcnt vmcnt(0)\ns_barrier")
            P(f"s_cmp_lg_u32 {sW}, 0\ns_cbranch_scc1 L_noflag2")
            P(f"s_mov_b64 s[46:47], exec\ns_mov_b64 exec, s[98:99]")
            P(f"global_store_dwordx2 v{VFL}, v[28:29], s[{WS_}:{WS_+1}] sc1")
            P("s_mov_b64 exec, s[46:47]\nL_noflag2:")
    P("s_cmp_eq_u32 s30, 1\ns_cbranch_scc1 L_b_done")
    P(f"s_xor_b32 s35, {sHG}, 1"); publish(AB, "s35")
    P(f"s_lshl_b32 s35, s35, 2\ns_add_u32 s35, s35, {sHG}\ns_lshl_b32 s35, s35, 3\ns_add_u32 s35, s35, s61\nv_mov_b32 v{VFL}, s35\ns_mov_b64 s[98:99], 1")
    P(f"v_xor_b32 v{VS}, 64, v{VS}\nv_xor_b32 v{VS+1}, 64, v{VS+1}")
    P("s_mov_b32 s30, 1\ns_branch L_b")
    P.loop_end("L_b")
    P("L_b_done:")
    stamp(8)
    P(f"s_cmp_lg_u32 {sW}, 0\ns_cbranch_scc1 L_nopoll2")
    P(f"s_lshl_b32 s63, {sHG}, 5\ns_add_u32 s55, s61, s63")
    poll("L_poll2", "s55", 8, f"s_lshl_b32 s48, 1, {sHG}\ns_xor_b32 s48, s48, 15\ns_mov_b32 s49, 0")
    P("L_nopoll2:")
    P("s_barrier")
    stamp(9)
    for k in range(3):
        P(f"s_add_u32 s33, {sHG}, {k+1}\ns_and_b32 s33, s33, 3\ns_lshl_b32 s33, s33, 2\ns_lshl_b32 s32, {sHG}, 4\ns_add_u32 s32, s32, s33\ns_lshl_b32 s32, s32, 12")
        for qd in range(4):
            d = RP + 16*k + 4*qd
            P(f"buffer_load_dwordx4 v[{d}:{d+3}], v{VO}, s[12:15], s32 offen offset:{qd*1024} sc1")
    P(f"v_and_b32 v2, 31, v{VL}\nv_lshrrev_b32 v3, 5, v{VL}")
    P(f"s_lshl_b32 s46, {sB}, 7\ns_lshl_b32 s47, {sW}, 5\ns_add_u32 s46, s46, s47")
    P("v_add_u32 v2, s46, v2\nv_lshlrev_b32 v2, 11, v2\nv_lshl_add_u32 v2, v3, 4, v2")
    P(f"s_lshl_b32 s46, {sHI}, 8\ns_lshl_b32 s47, {sHG}, 6\ns_add_u32 s46, s46, s47\nv_add_u32 v2, s46, v2")
    for k in range(3):
        P(f"s_waitcnt vmcnt({8-4*k})")
        for i in range(16): P(f"v_add_f32 v{AB+i}, v{AB+i}, v{RP+16*k+i}")
    for sp in range(2):
        for i in range(4): P(f"v_cvt_pk_bf16_f32 v{8+4*sp+i}, v{AB+8*sp+2*i}, v{AB+8*sp+2*i+1}")
        P(f"buffer_store_dwordx4 v[{8+4*sp}:{11+4*sp}], v2, s[16:19], 0 offen offset:{32*sp}")
    if prof:
        P("s_waitcnt vmcnt(0)")
        stamp(10)
        P("s_waitcnt lgkmcnt(0)")
        P(f"s_lshl_b32 s46, s2, 2\ns_add_u32 s46, s46, {sW}\ns_lshl_b32 s46, s46, 6\ns_add_u32 s46, s46, {WS_PROF}")
        P(f"s_add_u32 s48, s{WS_}, s46\ns_addc_u32 s49, s{WS_+1}, 0")
        P(f"v_cmp_eq_u32 vcc, 0, v{VL}\ns_and_saveexec_b64 s[46:47], vcc\nv_mov_b32 v2, 0")
        for i in range(11):
            P(f"v_mov_b32 v4, s{64+2*i}\nglobal_store_dword v2, v4, s[48:49] offset:{4*i}")
        P("s_waitcnt vmcnt(0)")
    P("L_end:\ns_endpgm")
    return P

def build(o):
    hdr = open("standalone__mha_block_cached__near_ridge.s.ref").read().split("; Override launch")[0]
    P = gen(o)
    body = P.finalize(verbose=o.get('verbose', False))
    return f"""{hdr.rstrip()}
; @launch grid=(256,1,1) block=(256,1,1) lds=163840
.amdgcn_target "amdgcn-amd-amdhsa--gfx950"
.text
.globl {NAME}
.p2align 8
.type {NAME},@function
{body}
.section .rodata,"a"
.p2align 6
.amdhsa_kernel {NAME}
  .amdhsa_next_free_vgpr 512
  .amdhsa_next_free_sgpr 102
  .amdhsa_accum_offset 256
  .amdhsa_group_segment_fixed_size 0
  .amdhsa_kernarg_size 64
  .amdhsa_user_sgpr_count 2
  .amdhsa_user_sgpr_kernarg_segment_ptr 1
  .amdhsa_system_sgpr_workgroup_id_x 1
  .amdhsa_float_denorm_mode_32 3
.end_amdhsa_kernel
"""

if __name__ == "__main__":
    o = dict(verbose=True)
    for a in sys.argv[2:]:
        k, v = a.split('=', 1)
        o[k] = int(v) if v.lstrip('-').isdigit() else v
    open(sys.argv[1], "w").write(build(o))
```
